```python
import torch

def _softmax(x, axis=-1):
    return torch.softmax(x, dim=axis)
def _gelu(x):
    return torch.nn.functional.gelu(x, approximate="tanh")
def _silu(x):
    return torch.nn.functional.silu(x)
def _sigmoid(x):
    return torch.sigmoid(x)
def _layernorm(x, axis=-1, eps=1e-5):
    m = x.mean(dim=axis, keepdim=True)
    v = x.var(dim=axis, keepdim=True, unbiased=False)
    return (x - m) / torch.sqrt(v + eps)
def _scatter_add(tgt, idx, src, axis=0):
    return tgt.clone().index_add_(axis, idx, src)
def _segment_sum(src, seg, n):
    out = torch.zeros((n,) + src.shape[1:], dtype=src.dtype)
    return out.index_add_(0, seg, src)
def _pad(x, pw):
    flat = tuple(v for pair in reversed(pw) for v in pair)
    return torch.nn.functional.pad(x, flat)

kernel_name = 'gated_mix__spectral_fnet__sliding_local_dilated__prompt'

def setup_inputs():

    _w = (lambda a: (lambda t: t.to(torch.bfloat16) if t.is_floating_point() else t)(torch.as_tensor(a)))
    def _A_setup():
        B, S, D = 1, 2048, 448
        ns = torch.arange(S)[:, None] * torch.arange(S)[None, :]
        nd = torch.arange(D)[:, None] * torch.arange(D)[None, :]
        Ws_re = torch.cos(-2.0 * torch.pi * ns / S).to(float)
        Ws_im = torch.sin(-2.0 * torch.pi * ns / S).to(float)
        Wd_re = torch.cos(-2.0 * torch.pi * nd / D).to(float)
        Wd_im = torch.sin(-2.0 * torch.pi * nd / D).to(float)
        return {
            "x": _w((lambda *s: torch.randn(*s, dtype=torch.bfloat16) * 0.05)(B, S, D)),
            "dft_seq_re": _w(Ws_re),
            "dft_seq_im": _w(Ws_im),
            "dft_hid_re": _w(Wd_re),
            "dft_hid_im": _w(Wd_im),
        }
    _A_in = _A_setup()

    def _B_setup():
        B, S, D = 1, 2048, 448
        return {
            "x": _w((lambda *s: torch.randn(*s, dtype=torch.bfloat16) * 0.05)(B, S, D)),
            "wqkv": _w((lambda *s: torch.randn(*s, dtype=torch.bfloat16) * 1.6)(D, 3 * D)),
            "wo": _w((lambda *s: torch.randn(*s, dtype=torch.bfloat16) * 0.2)(D, D)),
        }
    _B_in = _B_setup()

    return {
        "A_x": _A_in["x"],
        "A_dft_seq_re": _A_in["dft_seq_re"],
        "A_dft_seq_im": _A_in["dft_seq_im"],
        "A_dft_hid_re": _A_in["dft_hid_re"],
        "A_dft_hid_im": _A_in["dft_hid_im"],
        "B_x": _B_in["x"],
        "B_wqkv": _B_in["wqkv"],
        "B_wo": _B_in["wo"],
        "gate_w": _w((lambda *s: torch.randn(*s, dtype=torch.bfloat16) * 0.05)(448) * 16.0),
    }

def reference(A_x, A_dft_seq_re, A_dft_seq_im, A_dft_hid_re, A_dft_hid_im, B_x, B_wqkv, B_wo, gate_w):
    def _A_ref(x, dft_seq_re, dft_seq_im, dft_hid_re, dft_hid_im):
        a = torch.einsum("bsd,ed->bse", x, dft_hid_re)
        b = torch.einsum("bsd,ed->bse", x, dft_hid_im)
        y = torch.einsum("ts,bse->bte", dft_seq_re, a) - torch.einsum("ts,bse->bte", dft_seq_im, b)
        return y

    def _B_ref(x, wqkv, wo):
        B, S, D = x.shape
        H = 16; Dh = D // H
        W, dil = 8, 2
        qkv = (lambda x, *d: x.permute(*d))((x @ wqkv).reshape(B, S, 3, H, Dh), 2, 0, 3, 1, 4)
        q, k, v = qkv[0], qkv[1], qkv[2]
        scale = Dh ** -0.5
        pos = torch.arange(S)
        off = torch.arange(W) * dil
        idx = pos[:, None] - off[None, :]
        mask = idx >= 0
        idx_c = torch.where(mask, idx, 0).reshape(-1)
        kg = k[:, :, idx_c, :].reshape(B, H, S, W, Dh)
        vg = v[:, :, idx_c, :].reshape(B, H, S, W, Dh)
        logits = torch.einsum("bhsd,bhswd->bhsw", q, kg) * scale
        logits = torch.where(mask[None, None, :, :], logits, -1e9)
        attn = _softmax(logits, axis=-1)
        o = torch.einsum("bhsw,bhswd->bhsd", attn, vg)
        return (lambda x, *d: x.permute(*d))(o, 0, 2, 1, 3).reshape(B, S, D) @ wo

    x = A_x
    g = _sigmoid((x * gate_w).sum(-1, keepdims=True))
    a = _A_ref(x, A_dft_seq_re, A_dft_seq_im, A_dft_hid_re, A_dft_hid_im)
    b = _B_ref(x, B_wqkv, B_wo)
    return g * a + (1 - g) * b
```

```python
import re

TRANS = ('v_exp_f32', 'v_log_f32', 'v_rcp_f32', 'v_rsq_f32', 'v_sqrt_f32', 'v_sin_f32', 'v_cos_f32')

def regs_of(tok):
    tok = tok.strip().lstrip('-')
    m = re.fullmatch(r'([vas])(\d+)', tok)
    if m: return {(m.group(1), int(m.group(2)))}
    m = re.fullmatch(r'([vas])\[(\d+):(\d+)\]', tok)
    if m: return {(m.group(1), i) for i in range(int(m.group(2)), int(m.group(3)) + 1)}
    if tok == 'vcc': return {('s', 'vcc')}
    if tok == 'm0': return {('s', 'm0')}
    if tok == 'exec': return {('s', 'exec')}
    return set()

class Ins:
    def __init__(self, text):
        self.text = text
        body = text.split(';')[0].strip()
        self.op = body.split()[0] if body else ''
        rest = body[len(self.op):].strip()
        ops = [o.strip().split()[0] for o in rest.split(',') if o.strip()] if rest else []
        R = [regs_of(o) for o in ops]
        op = self.op
        self.defs, self.uses, self.srcc = set(), set(), set()
        self.kind = 'other'
        U = lambda l: set().union(*l) if l else set()
        if op.startswith('v_mfma'):
            self.kind = 'mfma'; self.defs = R[0]; self.uses = U(R[1:]); self.srcc = R[3]
            self.passes = 8 if '32x32' in op else 4
        elif op.startswith('v_permlane'):
            self.kind = 'valu'; self.defs = U(R[:2]); self.uses = U(R[:2])
        elif op.startswith('v_'):
            self.kind = 'valu'; self.defs = R[0]; self.uses = U(R[1:])
            if op.startswith('v_fmac') or op.startswith('v_writelane'): self.uses |= R[0]
            if '_co_' in op: self.defs |= R[1]
        elif op.startswith('ds_read'):
            self.kind = 'ds'; self.defs = R[0]; self.uses = U(R[1:])
        elif op.startswith('ds_'):
            self.kind = 'ds'; self.uses = U(R)
        elif op.startswith('buffer_load') or op.startswith('global_load'):
            self.kind = 'vmem'
            if ' lds' in body: self.uses = U(R) | {('s', 'm0')}
            else: self.defs = R[0]; self.uses = U(R[1:])
        elif op.startswith('buffer_') or op.startswith('global_'):
            self.kind = 'vmem'; self.uses = U(R)
            self.wide = R[0] if ('x4' in op or 'x3' in op) else set()
        elif op.startswith('s_'):
            self.kind = 'salu'
            if op.startswith(('s_cmp', 's_waitcnt', 's_barrier', 's_nop', 's_cbranch', 's_branch', 's_endpgm', 's_setprio', 's_sleep')):
                self.uses = U(R)
            elif R: self.defs = R[0]; self.uses = U(R[1:])
        self.states = int(rest) + 1 if op == 's_nop' else 1

def need(p, c):
    n = 0
    vec = lambda s: {r for r in s if r[0] != 's'}
    sca = lambda s: {r for r in s if r[0] == 's'}
    if p.kind == 'mfma':
        far = {4: 8, 8: 12}[p.passes]
        if c.kind == 'mfma':
            if p.defs & (c.uses - c.srcc): n = max(n, far)
            if p.defs & c.srcc and (p.defs != c.srcc or p.passes != c.passes): n = max(n, far - 2)
            if p.defs & c.defs and p.defs != c.srcc: n = max(n, far)
        elif c.kind in ('valu', 'ds', 'vmem'):
            if p.defs & (c.uses | c.defs): n = max(n, far)
            if c.kind == 'valu' and p.srcc & c.defs: n = max(n, p.passes - 1)
    if p.kind == 'valu':
        if c.kind == 'mfma' and vec(p.defs) & c.uses: n = max(n, 2)
        if c.kind == 'valu':
            if p.op in TRANS and p.defs & c.uses: n = max(n, 1)
            if c.op.startswith('v_permlane') and p.defs & c.uses: n = max(n, 2)
            if ('dpp' in c.op or 'row_' in c.text or 'quad_perm' in c.text) and p.defs & c.uses: n = max(n, 2)
            if c.op.startswith(('v_readlane', 'v_readfirstlane')) and vec(p.defs) & c.uses: n = max(n, 1)
            if sca(p.defs) & c.uses: n = max(n, 2)
        if c.kind == 'vmem' and sca(p.defs) & c.uses: n = max(n, 5)
    if p.kind == 'salu' and ('s', 'm0') in p.defs and c.kind == 'vmem' and ('s', 'm0') in c.uses: n = max(n, 1)
    if p.kind == 'vmem' and getattr(p, 'wide', None) and p.wide & c.defs: n = max(n, 2)
    return n

class Asm:
    def __init__(self):
        self.lines = []
        self.hist = []
        self.saved = {}
    def raw(self, t): self.lines.append(t)
    def label(self, name):
        self.lines.append(name + ':')
        if name in self.saved: self.hist = self.saved.pop(name)
    def __call__(self, text):
        for t in text.split('\n'):
            t = t.strip()
            if t: self.one(t)
    def one(self, text):
        c = Ins(text)
        dist, pad = 0, 0
        for p in reversed(self.hist):
            if dist >= 12: break
            pad = max(pad, need(p, c) - dist)
            dist += p.states
        if pad > 0:
            nop = Ins('s_nop %d' % (pad - 1))
            self.hist.append(nop); self.lines.append('    ' + nop.text)
        self.hist.append(c); self.hist = self.hist[-16:]
        self.lines.append('    ' + text)
        if c.op.startswith('s_cbranch'): self.saved[text.split()[1]] = list(self.hist)
    def text(self): return '\n'.join(self.lines) + '\n'

def weave(main, *fill):
    out = []
    n = len(main)
    pos = [0] * len(fill)
    for i, m in enumerate(main):
        out.append(m)
        for k, f in enumerate(fill):
            tgt = (len(f) * (i + 1) + n - 1) // n
            while pos[k] < tgt:
                out.append(f[pos[k]]); pos[k] += 1
    return out
```

```python
import math
from asmgen import weave

def kernel2(a, cfg):
    from gen import Stamps, lane_setup, srd, v, s, hx, f2u, MF, XB, WOB, WS_A, WS_G, OOB
    st = Stamps(a, cfg, 1)
    def emit(groups):
        for g in groups:
            for t in (g if isinstance(g, list) else [g]): a(t)
    a('''s_and_b32 s25, s2, 7
         s_lshr_b32 s26, s2, 3
         s_mul_i32 s25, s25, 29
         s_add_u32 s25, s25, s26
         s_cmp_ge_u32 s2, 232
         s_cbranch_scc1 K2_end
         s_cmp_ge_u32 s25, 231
         s_cbranch_scc1 K2_end''')
    st.real()
    a('''s_load_dwordx2 s[92:93], s[0:1], 56
         s_load_dwordx2 s[94:95], s[0:1], 72
         s_load_dwordx2 s[90:91], s[0:1], 88
         s_mul_i32 s27, s25, 9363
         s_lshr_b32 s27, s27, 16
         s_mul_i32 s28, s27, 7
         s_sub_u32 s28, s25, s28''')
    lane_setup(a)
    vA0, vA1, vO0, vO1, vW = 8, 9, 10, 11, 12
    a(f'''s_and_b32 s29, s24, 1
          s_lshl_b32 s29, s29, 2
          v_add_u32 v6, s29, v3
          v_xor_b32 v6, v5, v6
          v_and_b32 v6, 7, v6
          v_lshlrev_b32 v6, 4, v6
          s_lshl_b32 s30, s24, 3
          v_add_u32 v7, s30, v4
          v_lshl_add_u32 v13, v7, 9, v6
          s_lshl_b32 s31, s27, 15
          s_cmp_eq_u32 s27, 32
          s_cselect_b32 s32, 16384, s31
          s_cselect_b32 s37, 1, 0
          v_add_u32 {v(vA0)}, s32, v13
          s_add_u32 s31, s31, 16384
          s_and_b32 s33, s27, 31
          s_cmp_eq_u32 s33, 0
          s_cselect_b32 s31, {hx(OOB)}, s31
          s_cselect_b32 s34, {hx(OOB)}, 0
          v_add_u32 {v(vA1)}, s31, v13
          s_movk_i32 s33, 896
          v_lshlrev_b32 v13, 6, v7
          v_add_u32 v13, s27, v13
          v_mad_u32_u24 {v(vO0)}, v13, s33, v6
          v_sub_u32 v13, 2048, v13
          v_mad_u32_u24 {v(vO1)}, v13, s33, v6
          v_or_b32 {v(vO1)}, s34, {v(vO1)}
          v_and_b32 v6, 1, v3
          v_lshlrev_b32 v6, 1, v6
          v_add_u32 v6, s29, v6
          v_xor_b32 v6, v5, v6
          v_lshlrev_b32 v6, 4, v6
          s_lshl_b32 s30, s28, 7
          v_add_u32 v6, s30, v6
          v_mad_u32_u24 {v(vW)}, v7, s33, v6
          s_lshl_b32 s35, s24, 10
          s_waitcnt lgkmcnt(0)''')
    srd(a, 16, 90, 0x100000, WS_A); srd(a, 12, 90, XB); srd(a, 8, 92, WOB); srd(a, 4, 94, XB); srd(a, 20, 90, 8192, WS_G)
    LO = lambda c: 32768 + c * 16384
    dA = []
    for q in range(4):
        for h in range(2):
            dA.append([f's_add_u32 m0, s35, {q*8192 + h*4096 - 128*q}', f'buffer_load_dwordx4 {v(vA0+h)}, s[16:19], 0 offen offset:{128*q} lds'])
    dO = []
    for c in range(7):
        for h in range(2):
            dO.append([f's_add_u32 m0, s35, {LO(c) + h*4096 - 128*c}', f'buffer_load_dwordx4 {v(vO0+h)}, s[12:15], 0 offen offset:{128*c} lds'])
            dO.append([f's_add_u32 m0, s35, {LO(c) + 8192 + h*4096}', f's_mov_b32 s36, {c*57344 + h*28672}',
                       f'buffer_load_dwordx4 {v(vW)}, s[8:11], s36 offen lds'])
    emit(dA)
    vG, vS, vRA, vRO, vRW = 14, 18, 22, 24, 28
    pre = []
    for rt in range(4):
        g = [f'v_lshlrev_b32 v6, 6, v2', f'v_add_u32 v6, {1024*(rt&1)}, v6', 'v_add_u32 v6, s27, v6']
        if rt >= 2: g += ['v_sub_u32 v6, 2048, v6']
        g += ['v_lshlrev_b32 v7, 2, v6']
        if rt >= 2: g += ['v_or_b32 v7, s34, v7']
        g += [f'buffer_load_dword {v(vG+rt)}, v7, s[20:23], 0 offen',
              'v_lshlrev_b32 v7, 3, v3', 's_lshl_b32 s31, s24, 5', 's_add_u32 s31, s31, s30', 'v_add_u32 v7, s31, v7',
              f'v_mad_u32_u24 {v(vS+rt)}, v6, s33, v7']
        if rt >= 2: g += [f'v_or_b32 {v(vS+rt)}, s34, {v(vS+rt)}']
        pre.append(g)
    emit(pre)
    a(f'''v_lshrrev_b32 v6, 1, v2
          v_xor_b32 v6, v3, v6
          v_lshlrev_b32 v6, 4, v6
          v_lshl_add_u32 {v(vRA)}, v2, 7, v6
          v_xor_b32 {v(vRA+1)}, 64, {v(vRA)}
          v_add_u32 {v(vRO)}, 0x8000, {v(vRA)}
          v_add_u32 {v(vRO+1)}, 0x8000, {v(vRA+1)}
          v_add_u32 {v(vRO+2)}, 0x18000, {v(vRA)}
          v_add_u32 {v(vRO+3)}, 0x18000, {v(vRA+1)}
          v_bfe_u32 v6, v0, 2, 2
          v_lshl_add_u32 v7, v3, 3, v6
          v_lshlrev_b32 v7, 7, v7
          v_and_b32 v6, 2, v6
          v_and_b32 v13, 1, v3
          v_lshl_add_u32 v6, v13, 2, v6
          v_lshlrev_b32 v6, 4, v6
          v_and_b32 v13, 3, v0
          v_lshlrev_b32 v13, 3, v13
          s_lshl_b32 s31, s24, 5
          v_add_u32 v13, s31, v13
          v_xor_b32 v13, v13, v6
          v_add_u32 v13, v13, v7
          v_add_u32 {v(vRW)}, 0xa000, v13
          v_add_u32 {v(vRW+1)}, 0x1a000, v13''')
    CF, SF, PR, ROT, TMP = 32, 64, 92, 108, 110
    gen = []
    gen += ['s_lshl_b32 s31, s28, 6', 's_lshl_b32 s32, s24, 4', 's_add_u32 s31, s31, s32', 'v_add_u32 v6, s31, v2',
            'v_cvt_f32_u32 v7, v6', f'v_mul_f32 v13, {hx(f2u(1/14))}, v7', f'v_mul_f32 v7, {hx(f2u(1/448))}, v7',
            'v_fract_f32 v13, v13', f'v_cos_f32 {v(ROT)}, v13', f'v_sin_f32 {v(ROT+1)}, v13',
            'v_lshlrev_b32 v13, 3, v3', 'v_cvt_f32_u32 v13, v13']
    for jj in range(8): gen += [f'v_add_f32 {v(PR+2*jj)}, {hx(f2u(float(jj)))}, v13', f'v_mul_f32 {v(PR+2*jj)}, {v(PR+2*jj)}, v7']
    for jj in range(8): gen += [f'v_fract_f32 {v(PR+2*jj)}, {v(PR+2*jj)}']
    for jj in range(8): gen += [f'v_sin_f32 {v(PR+2*jj+1)}, {v(PR+2*jj)}', f'v_cos_f32 {v(PR+2*jj)}, {v(PR+2*jj)}']
    for ks in range(7):
        for q in range(4):
            gen += [f'v_cvt_pk_bf16_f32 {v(CF+4*ks+q)}, {v(PR+4*q)}, {v(PR+4*q+2)}',
                    f'v_cvt_pk_bf16_f32 {v(SF+4*ks+q)}, {v(PR+4*q+1)}, {v(PR+4*q+3)}']
        if ks < 6:
            for h in range(2):
                for jj in range(4*h, 4*h + 4):
                    gen += [f'v_pk_mul_f32 {v(TMP+2*(jj&3),2)}, {v(PR+2*jj,2)}, {v(ROT,2)} op_sel:[0,0] op_sel_hi:[1,0]']
                for jj in range(4*h, 4*h + 4):
                    gen += [f'v_pk_fma_f32 {v(PR+2*jj,2)}, {v(PR+2*jj,2)}, {v(ROT,2)}, {v(TMP+2*(jj&3),2)} op_sel:[1,1,0] op_sel_hi:[0,1,1] neg_lo:[1,0,0]']
    gen += ['v_and_b32 v6, 1, v6', 'v_lshlrev_b32 v6, 15, v6', 'v_or_b32 v6, 0x3f00, v6', 'v_cmp_eq_u32 vcc, 0, v3',
            f'v_mov_b32 {v(CF+29)}, 0', f'v_mov_b32 {v(CF+30)}, 0', f'v_mov_b32 {v(CF+31)}, 0', f'v_cndmask_b32 {v(CF+28)}, 0, v6, vcc']
    GC, GT = 120, 144
    gc = lambda u: GC + 4 * u
    gs = lambda u: GC + 8 + 4 * u
    gn = lambda u: GC + 16 + 4 * u
    gen2 = ['v_lshlrev_b32 v6, 2, v3', 'v_cvt_f32_u32 v6, v6']
    for u in range(2):
        gen2 += ['v_lshlrev_b32 v7, 1, v2', f'v_add_u32 v7, {32*u}, v7', 'v_add_u32 v7, s37, v7', 'v_cvt_f32_u32 v7, v7',
                 f'v_mul_f32 v7, {hx(f2u(1/64))}, v7']
        for jj in range(8):
            gen2 += [f'v_add_f32 {v(GT+jj)}, {hx(f2u(float(jj if jj < 4 else 12 + jj)))}, v6', f'v_mul_f32 {v(GT+jj)}, {v(GT+jj)}, v7']
        for jj in range(8): gen2 += [f'v_fract_f32 {v(GT+jj)}, {v(GT+jj)}']
        for jj in range(8): gen2 += [f'v_sin_f32 {v(GT+8+jj)}, {v(GT+jj)}', f'v_cos_f32 {v(GT+jj)}, {v(GT+jj)}']
        for q in range(4):
            gen2 += [f'v_cvt_pk_bf16_f32 {v(gc(u)+q)}, {v(GT+2*q)}, {v(GT+2*q+1)}', f'v_cvt_pk_bf16_f32 {v(gs(u)+q)}, {v(GT+8+2*q)}, {v(GT+9+2*q)}']
        for q in range(4): gen2 += [f'v_xor_b32 {v(gn(u)+q)}, 0x80008000, {v(gs(u)+q)}']
    emit(weave(dO, gen + gen2))
    st.real()
    FA, HA = 144, 176
    fa = lambda b, t: FA + (b * 4 + t) * 4
    hc = lambda t: HA + 4 * t
    hs = lambda t: HA + 16 + 4 * t
    rdA = lambda ks: [f'ds_read_b128 {v(fa(ks&1,t),4)}, {v(vRA+(ks&1))} offset:{(ks>>1)*8192 + t*2048}' for t in range(4)]
    def mfA(ks):
        g = []
        for t in range(4):
            g.append(f'{MF} {v(hc(t),4)}, {v(fa(ks&1,t),4)}, {v(CF+4*ks,4)}, {v(hc(t),4) if ks else 0}')
            if ks < 7: g.append(f'{MF} {v(hs(t),4)}, {v(fa(ks&1,t),4)}, {v(SF+4*ks,4)}, {v(hs(t),4) if ks else 0}')
        return g
    a('s_waitcnt vmcnt(32)\ns_barrier')
    st.real()
    emit(rdA(0))
    for ks in range(8):
        a('s_waitcnt lgkmcnt(0)')
        emit(weave(mfA(ks), rdA(ks + 1) if ks < 7 else []))
    st.real()
    BA, FO, FWv, HP, PQ = 208, 32, 64, 72, 92
    ba = lambda rt: BA + 4 * rt
    fo = lambda b, rt: FO + (b * 4 + rt) * 4
    fw = lambda b: FWv + 4 * b
    def rdO(k):
        c, ks = divmod(k, 2); hi = c >= 4; off = (c - 4 * hi) * 16384; b = k & 1
        return ([f'ds_read_b64_tr_b16 {v(fw(b)+2*hf,2)}, {v(vRW+hi)} offset:{off + (32*ks+4*hf)*128}' for hf in range(2)] +
                [f'ds_read_b128 {v(fo(b,rt),4)}, {v(vRO+2*hi+ks)} offset:{off + rt*2048}' for rt in range(4)])
    mfO = lambda k: [f'{MF} {v(ba(rt),4)}, {v(fw(k&1),4)}, {v(fo(k&1,rt),4)}, {v(ba(rt),4) if k else 0}' for rt in range(4)]
    hp = lambda part, slot: HP + (part * 2 + slot) * 4
    cvtH = []
    for part in range(2):
        for t in range(4):
            src = (hc, hs)[part](t)
            for q in range(2): cvtH.append(f'v_cvt_pk_bf16_f32 {v(hp(part,t>>1) + 2*(t&1) + q)}, {v(src+2*q)}, {v(src+2*q+1)}')
    P = lambda u: PQ + 8 * u
    Q = lambda u: PQ + 8 * u + 4
    mfY = []
    for u in range(2): mfY += [f'{MF} {v(P(u),4)}, {v(hp(0,0),4)}, {v(gc(u),4)}, 0', f'{MF} {v(Q(u),4)}, {v(hp(1,1),4)}, {v(gc(u),4)}, 0']
    for u in range(2): mfY += [f'{MF} {v(P(u),4)}, {v(hp(0,1),4)}, {v(gs(u),4)}, {v(P(u),4)}', f'{MF} {v(Q(u),4)}, {v(hp(1,0),4)}, {v(gn(u),4)}, {v(Q(u),4)}']
    bar = {0: 20, 4: 12, 8: 4, 12: 0}
    a(f's_waitcnt vmcnt({bar[0]})\ns_barrier')
    emit(rdO(0)); emit(cvtH); emit(mfY)
    for k in range(14):
        a('s_waitcnt lgkmcnt(0)')
        if k + 1 in bar: a(f's_waitcnt vmcnt({bar[k+1]})\ns_barrier')
        emit(weave(mfO(k), rdO(k + 1) if k < 13 else []))
    st.real()
    Y, GG, OUT = 144, 160, 168
    for rt in range(4):
        a(f'v_lshlrev_b32 {v(GG+2*rt)}, 16, {v(vG+rt)}\nv_and_b32 {v(GG+2*rt+1)}, 0xffff0000, {v(vG+rt)}')
        for i in range(4):
            a(f'{"v_add_f32" if rt < 2 else "v_sub_f32"} {v(Y+4*rt+i)}, {v(P(rt&1)+i)}, {v(Q(rt&1)+i)}')
        for i in range(4): a(f'v_mul_f32 {v(Y+4*rt+i)}, {v(Y+4*rt+i)}, {v(GG+2*rt)}')
    for rt in range(4):
        for i in range(4): a(f'v_fmac_f32 {v(Y+4*rt+i)}, {v(ba(rt)+i)}, {v(GG+2*rt+1)}')
        for q in range(2): a(f'v_cvt_pk_bf16_f32 {v(OUT+2*rt+q)}, {v(Y+4*rt+2*q)}, {v(Y+4*rt+2*q+1)}')
        a(f'buffer_store_dwordx2 {v(OUT+2*rt,2)}, {v(vS+rt)}, s[4:7], 0 offen')
    st.flush(90)
    a.label('K2_end'); a('s_endpgm')
    return 232, 147456, 224
```

```python
import sys, math, struct
from asmgen import Asm, weave

NAME = 'gated_mix__spectral_fnet__sliding_local_dilated__prompt'
S, D = 2048, 448
XB, WB, WOB = S * D * 2, D * 3 * D * 2, D * D * 2
WS_A, WS_G, WS_T = 0x200000, 0x300000, 0x400000
OOB = 0x80000000
f2u = lambda f: struct.unpack('<I', struct.pack('<f', f))[0]
hx = lambda v: '0x%x' % (v & 0xffffffff)
def v(i, n=1): return 'v%d' % i if n == 1 else 'v[%d:%d]' % (i, i + n - 1)
def s(i, n=1): return 's%d' % i if n == 1 else 's[%d:%d]' % (i, i + n - 1)
MF = 'v_mfma_f32_16x16x32_bf16'

class Cfg:
    TQ = 3
    diag = False

def srd(a, dst, src, nbytes, off=0):
    if off:
        a(f's_add_u32 s{dst}, s{src}, {hx(off)}\ns_addc_u32 s{dst+1}, s{src+1}, 0')
    else:
        a(f's_mov_b32 s{dst}, s{src}\ns_mov_b32 s{dst+1}, s{src+1}')
    a(f's_mov_b32 s{dst+2}, {hx(nbytes)}\ns_mov_b32 s{dst+3}, 0x20000')

class Stamps:
    def __init__(self, a, cfg, kern): self.a, self.on, self.n, self.kern = a, cfg.diag, 0, kern
    def real(self):
        if self.on: self.a(f's_memrealtime {s(70 + 2*self.n, 2)}'); self.n += 1
    def flush(self, wsptr):
        if not self.on: return
        a = self.a
        self.real()
        a('s_waitcnt vmcnt(0) lgkmcnt(0)')
        self.real()
        a('s_waitcnt lgkmcnt(0)')
        srd(a, 64, wsptr, 0x100000, WS_T)
        a(f's_lshl_b32 s68, s2, 2\ns_add_u32 s68, s68, s24\ns_lshl_b32 s68, s68, 6\ns_add_u32 s68, s68, {self.kern * 0x20000}')
        a('v_mov_b32 v1, 0')
        for i in range(self.n):
            a(f'v_mov_b32 v2, s{70 + 2*i}\nbuffer_store_dword v2, v1, s[64:67], s68 offen offset:{4*i}\ns_nop 1')
        a(f'v_mov_b32 v2, {self.n}\nbuffer_store_dword v2, v1, s[64:67], s68 offen offset:60')

def lane_setup(a):
    a('''v_lshrrev_b32 v1, 6, v0
         v_and_b32 v0, 63, v0
         v_readfirstlane_b32 s24, v1
         v_and_b32 v2, 15, v0
         v_lshrrev_b32 v3, 4, v0
         v_lshrrev_b32 v4, 3, v0
         v_and_b32 v5, 7, v0''')

def attention(a, cfg, st):
    TQ = cfg.TQ; NT = 2 * TQ + 1; R = 32 * TQ
    XP = NT * 2048; CH = XP + 24576; NX = 2 * NT
    nxw = (NX + 3) // 4; per = 6 + NX // 4
    nrb = (S + R - 1) // R
    pern = nrb * 8 // 8
    a(f'''s_lshr_b32 s27, s25, 1
          s_mul_i32 s27, s27, {pern}
          s_add_u32 s27, s27, s26
          s_and_b32 s28, s27, 3
          s_lshr_b32 s27, s27, 2
          s_and_b32 s30, s25, 1
          s_lshl_b32 s30, s30, 2
          s_add_u32 s28, s28, s30
          s_mul_i32 s29, s27, {R}
          s_and_b32 s30, s24, 1
          s_lshr_b32 s31, s24, 1''')
    vXo, vWo, vXr, vWr = 8, 12, 14, 22
    a(f'''s_lshl_b32 s32, s30, 2
          v_add_u32 v6, s32, v3
          v_xor_b32 v6, v5, v6
          v_and_b32 v6, 7, v6
          v_lshlrev_b32 v6, 4, v6
          s_lshl_b32 s32, s24, 3
          s_add_u32 s32, s32, s29
          s_sub_u32 s32, s32, 16
          s_movk_i32 s33, 896
          s_movk_i32 s34, 2047''')
    for n in range(nxw):
        a(f'''v_add_u32 v7, s32, v4
              v_add_u32 v7, {32*n}, v7
              v_max_i32 v7, 0, v7
              v_min_i32 v7, s34, v7
              v_mad_u32_u24 {v(vXo+n)}, v7, s33, v6''')
    a(f'''v_and_b32 v6, 1, v3
          v_lshlrev_b32 v6, 1, v6
          s_lshl_b32 s32, s30, 2
          v_add_u32 v6, s32, v6
          v_xor_b32 v6, v5, v6
          v_min_u32 v6, 6, v6
          v_lshlrev_b32 v6, 4, v6
          s_mul_i32 s32, s28, 112
          v_add_u32 v6, s32, v6
          s_lshl_b32 s32, s24, 3
          v_add_u32 v7, s32, v4
          s_movk_i32 s33, 2688
          v_mad_u32_u24 {v(vWo)}, v7, s33, v6
          s_lshl_b32 s35, s24, 10''')
    def dma(c):
        slot = c % 4; g = []
        for n in range(nxw):
            t = [f's_add_u32 m0, s35, {slot*CH + n*4096}', f's_movk_i32 s36, {128*c}',
                 f'buffer_load_dwordx4 {v(vXo+n)}, s[4:7], s36 offen lds']
            if 4 * n + 3 >= NX:
                lab = f'Lskip_{c}_{n}'
                t = [f's_cmp_ge_u32 s24, {NX - 4*n}', f's_cbranch_scc1 {lab}'] + t + [lab + ':']
            g.append(t)
        for sec in range(3):
            for n in range(2):
                g.append([f's_add_u32 m0, s35, {slot*CH + XP + sec*8192 + n*4096}',
                          f's_mov_b32 s36, {c*64*2688 + sec*896 + n*32*2688}',
                          f'buffer_load_dwordx4 {v(vWo)}, s[8:11], s36 offen lds'])
        return g
    def emit(groups):
        for g in groups:
            for t in (g if isinstance(g, list) else [g]):
                if t.endswith(':'): a.label(t[:-1])
                else: a(t)
    emit(dma(0))
    a(f'''v_lshrrev_b32 v6, 1, v2
          v_xor_b32 v6, v3, v6
          v_lshlrev_b32 v6, 4, v6
          v_lshl_add_u32 v6, v2, 7, v6
          s_mul_i32 s32, s31, {TQ*2048}
          v_add_u32 v6, s32, v6
          v_xor_b32 v7, 64, v6''')
    for sl in range(4):
        a(f'v_add_u32 {v(vXr+2*sl)}, {sl*CH}, v6\nv_add_u32 {v(vXr+2*sl+1)}, {sl*CH}, v7')
    a(f'''v_bfe_u32 v6, v0, 2, 2
          v_lshl_add_u32 v7, v3, 3, v6
          v_lshlrev_b32 v7, 7, v7
          v_and_b32 v6, 2, v6
          v_and_b32 v30, 1, v3
          v_lshl_add_u32 v6, v30, 2, v6
          v_lshlrev_b32 v6, 4, v6
          v_and_b32 v30, 3, v0
          v_lshlrev_b32 v30, 3, v30
          s_mul_i32 s32, s30, 56
          v_add_u32 v30, s32, v30
          v_add_u32 v31, 32, v30
          v_xor_b32 v30, v30, v6
          v_xor_b32 v31, v31, v6
          v_add_u32 v30, v30, v7
          v_add_u32 v31, v31, v7''')
    for sl in range(4):
        a(f'v_add_u32 {v(vWr+2*sl)}, {sl*CH + XP}, v30\nv_add_u32 {v(vWr+2*sl+1)}, {sl*CH + XP}, v31')
    emit(dma(1)); emit(dma(2))
    st.real()
    FX, FW = 32, 32 + 8 * (TQ + 1)
    fx = lambda b, t: FX + (b * (TQ + 1) + t) * 4
    fw = lambda b, sec, dt: FW + (b * 6 + sec * 2 + dt) * 4
    AC = FW + 48
    aq = lambda t, dt: AC + ((t - 1) * 2 + dt) * 4
    ak = lambda t, dt: AC + TQ * 8 + (t * 2 + dt) * 4
    av = lambda t, dt: AC + TQ * 8 + (TQ + 1) * 8 + (t * 2 + dt) * 4
    END = AC + TQ * 8 + (TQ + 1) * 16
    def reads(k):
        c, ks = divmod(k, 2); sl = c % 4; b = k & 1; g = []
        for sec in (1, 2, 0):
            for dt in range(2):
                for hf in range(2):
                    g.append(f'ds_read_b64_tr_b16 {v(fw(b,sec,dt)+2*hf,2)}, {v(vWr+2*sl+dt)} offset:{sec*8192 + (32*ks+4*hf)*128}')
        xs = [f'ds_read_b128 {v(fx(b,t),4)}, {v(vXr+2*sl+ks)} offset:{t*2048}' for t in range(TQ + 1)]
        return xs[:1] + g[:4] + xs[1:] + g[4:]
    def mfmas(k):
        b = k & 1; g = []
        C = lambda r: '0' if k == 0 else v(r, 4)
        for t in range(TQ + 1):
            for dt in range(2): g.append(f'{MF} {v(ak(t,dt),4)}, {v(fw(b,1,dt),4)}, {v(fx(b,t),4)}, {C(ak(t,dt))}')
        for t in range(TQ + 1):
            for dt in range(2): g.append(f'{MF} {v(av(t,dt),4)}, {v(fx(b,t),4)}, {v(fw(b,2,dt),4)}, {C(av(t,dt))}')
        for t in range(1, TQ + 1):
            for dt in range(2): g.append(f'{MF} {v(aq(t,dt),4)}, {v(fw(b,0,dt),4)}, {v(fx(b,t),4)}, {C(aq(t,dt))}')
        return g
    masks = []
    for i in range(4):
        masks.append([f'v_lshlrev_b32 v6, 2, v3', f'v_sub_u32 v6, v2, v6', f'v_subrev_u32 v6, {i}, v6', 'v_add_u32 v7, 16, v6',
                      f'v_and_b32 v6, {hx(~14)}, v6', f'v_and_b32 v7, {hx(~14)}, v7',
                      f'v_cmp_eq_u32 {s(48+2*i,2)}, 0, v6', f'v_cmp_eq_u32 {s(40+2*i,2)}, 0, v7'])
    for m in masks: emit([m])
    a('s_add_u32 s32, s27, s31\ns_cmp_eq_u32 s32, 0')
    for i in range(4): a(f's_cselect_b64 {s(56+2*i,2)}, 0, {s(40+2*i,2)}')
    a(f'''v_cmp_ne_u32 s[38:39], 3, v3
          s_mul_i32 s32, s31, {TQ*16}
          s_add_u32 s32, s32, s29
          v_add_u32 v6, s32, v2
          s_movk_i32 s33, 896
          s_mul_i32 s32, s28, 112
          s_mul_i32 s34, s30, 56
          s_add_u32 s32, s32, s34
          v_lshlrev_b32 v7, 3, v3
          v_add_u32 v7, s32, v7
          v_mad_u32_u24 v30, v6, s33, v7
          v_mov_b32 v7, {hx(OOB)}
          v_cndmask_b32 v31, v7, v30, s[38:39]''')
    for c in range(7):
        n = 2 * per if c <= 4 else (per if c == 5 else 0)
        a(f's_waitcnt vmcnt({n}) lgkmcnt(0)\ns_barrier')
        if c in (0, 1, 3, 6): st.real()
        d = dma(c + 3) if c <= 3 else []
        h = (len(d) + 1) // 2
        if c == 0: emit(reads(0)); emit(d[:h])
        else: emit(weave(mfmas(2*c - 1), reads(2*c), d[:h]))
        a('s_waitcnt lgkmcnt(0)')
        emit(weave(mfmas(2*c), reads(2*c + 1), d[h:]))
    a('s_waitcnt lgkmcnt(0)')
    emit(mfmas(13))
    st.real()
    KP = 32; QP = KP + 4 * (TQ + 1); VP = QP + 4 * TQ; SP = VP + 4 * (TQ + 1)
    kp = lambda t: KP + 4 * t
    qp = lambda t: QP + 4 * (t - 1)
    vp = lambda dt, t: VP + dt * 2 * (TQ + 1) + 2 * t
    sp = lambda t: SP + 8 * (t - 1)
    assert SP + 8 * TQ <= AC
    cv = lambda d, x: f'v_cvt_pk_bf16_f32 {v(d)}, {v(x)}, {v(x+1)}'
    for t in range(TQ + 1):
        for dt in range(2): a(cv(kp(t) + 2*dt, ak(t, dt))); a(cv(kp(t) + 2*dt + 1, ak(t, dt) + 2))
    for t in range(TQ + 1):
        for dt in range(2): a(cv(vp(dt, t), av(t, dt))); a(cv(vp(dt, t) + 1, av(t, dt) + 2))
    for t in range(1, TQ + 1):
        for dt in range(2): a(cv(qp(t) + 2*dt, aq(t, dt))); a(cv(qp(t) + 2*dt + 1, aq(t, dt) + 2))
        a(f'v_cndmask_b32 {v(qp(t)+2)}, 0, {v(qp(t)+2)}, s[38:39]\nv_cndmask_b32 {v(qp(t)+3)}, 0, {v(qp(t)+3)}, s[38:39]')
    for t in range(1, TQ + 1):
        a(f'{MF} {v(sp(t),4)}, {v(kp(t-1),4)}, {v(qp(t),4)}, 0\n{MF} {v(sp(t)+4,4)}, {v(kp(t),4)}, {v(qp(t),4)}, 0')
    sc = 28 ** -0.5 * math.log2(math.e)
    a(f's_mov_b32 s32, {hx(f2u(sc))}\nv_mov_b32 v6, {hx(f2u(-1e30))}')
    T = range(1, TQ + 1)
    tm = lambda t: AC + 4 * (t - 1)
    for t in T:
        for i in range(4):
            a(f'v_cndmask_b32 {v(sp(t)+i)}, v6, {v(sp(t)+i)}, {s((56 if t == 1 else 40)+2*i,2)}')
            a(f'v_cndmask_b32 {v(sp(t)+4+i)}, v6, {v(sp(t)+4+i)}, {s(48+2*i,2)}')
    def reduce(op3, op2):
        for t in T: a(f'{op3} {v(tm(t))}, {v(sp(t))}, {v(sp(t)+1)}, {v(sp(t)+2)}' if op3 else f'{op2} {v(tm(t))}, {v(sp(t))}, {v(sp(t)+1)}')
        if op3:
            for t in T: a(f'{op3} {v(tm(t)+1)}, {v(sp(t)+3)}, {v(sp(t)+4)}, {v(sp(t)+5)}')
            for t in T: a(f'{op3} {v(tm(t))}, {v(tm(t))}, {v(sp(t)+6)}, {v(sp(t)+7)}')
        else:
            for t in T: a(f'{op2} {v(tm(t)+1)}, {v(sp(t)+2)}, {v(sp(t)+3)}')
            for i in (4, 6):
                for t in T: a(f'{op2} {v(tm(t))}, {v(tm(t))}, {v(sp(t)+i)}')
                for t in T: a(f'{op2} {v(tm(t)+1)}, {v(tm(t)+1)}, {v(sp(t)+i+1)}')
        for t in T: a(f'{op2} {v(tm(t))}, {v(tm(t))}, {v(tm(t)+1)}')
        for sw in ('v_permlane16_swap_b32', 'v_permlane32_swap_b32'):
            for t in T: a(f'v_mov_b32 {v(tm(t)+1)}, {v(tm(t))}')
            for t in T: a(f'{sw} {v(tm(t))}, {v(tm(t)+1)}')
            for t in T: a(f'{op2} {v(tm(t))}, {v(tm(t))}, {v(tm(t)+1)}')
    reduce('v_max3_f32', 'v_max_f32')
    for t in T: a(f'v_mul_f32 {v(tm(t))}, s32, {v(tm(t))}')
    for i in range(8):
        for t in T: a(f'v_fma_f32 {v(sp(t)+i)}, {v(sp(t)+i)}, s32, -{v(tm(t))}')
    for i in range(8):
        for t in T: a(f'v_exp_f32 {v(sp(t)+i)}, {v(sp(t)+i)}')
    reduce(None, 'v_add_f32')
    for t in T: a(f'v_rcp_f32 {v(tm(t))}, {v(tm(t))}')
    for i in range(8):
        for t in T: a(f'v_mul_f32 {v(sp(t)+i)}, {v(sp(t)+i)}, {v(tm(t))}')
    for t in T:
        for i in range(4): a(cv(qp(t) + i, sp(t) + 2*i))
    for t in T:
        for dt in range(2): a(f'{MF} {v(sp(t)+4*dt,4)}, {v(vp(dt,t-1),4)}, {v(qp(t),4)}, 0')
    for t in T:
        a(f's_mov_b32 s33, {(t-1)*16*896}')
        for dt in range(2):
            o = KP + 4 * (t - 1) + 2 * dt
            a(cv(o, sp(t) + 4*dt)); a(cv(o + 1, sp(t) + 4*dt + 2))
            a(f'buffer_store_dwordx2 {v(o,2)}, {v(30+dt)}, s[12:15], s33 offen offset:{32*dt}')
    return END, 4 * CH, nrb

def spectral(a, cfg, st, first):
    a(f'''s_sub_u32 s27, s26, {first}
          s_and_b32 s28, s27, 1
          s_lshr_b32 s27, s27, 1
          s_lshl_b32 s29, s25, 2
          s_add_u32 s27, s27, s29
          s_lshl_b32 s28, s28, 8
          s_lshl_b32 s29, s24, 2
          v_add_u32 v6, s29, v3
          v_lshlrev_b32 v7, 5, v6
          v_add_u32 v7, s27, v7
          s_movk_i32 s33, 896
          v_lshlrev_b32 v8, 4, v2
          v_add_u32 v8, s28, v8
          v_sub_u32 v9, 880, v8''')
    for n in range(4):
        b = 32 + 10 * n
        a(f'''v_add_u32 v10, {512*n}, v7
              v_sub_u32 v11, 2048, v10
              v_and_b32 v11, 2047, v11
              v_mad_u32_u24 v10, v10, s33, v8
              v_mad_u32_u24 v11, v11, s33, v9
              buffer_load_dwordx4 {v(b,4)}, v10, s[4:7], 0 offen
              buffer_load_dwordx4 {v(b+4,4)}, v11, s[4:7], 0 offen
              buffer_load_dword {v(b+8)}, v11, s[4:7], 0 offen offset:16''')
    FB = 80
    a(f'''v_lshrrev_b32 v10, 1, v2
          s_lshl_b32 s29, s24, 3
          v_add_u32 v10, s29, v10
          v_and_b32 v11, 1, v2
          v_lshlrev_b32 v16, 15, v10
          v_lshl_add_u32 v16, v11, 14, v16
          v_lshl_add_u32 v16, v3, 4, v16
          s_lshl_b32 s29, s27, 9
          s_add_u32 s29, s29, s28
          v_add_u32 v16, s29, v16
          v_cvt_f32_u32 v12, v10
          v_cvt_f32_u32 v13, v11
          v_cvt_f32_u32 v14, s27
          v_mul_f32 v14, v14, v12
          v_mul_f32 v14, {hx(f2u(1/2048))}, v14
          v_fmac_f32 v14, {hx(f2u(0.25))}, v13
          v_mul_f32 v12, {hx(f2u(1/64))}, v12
          v_lshl_add_u32 v10, v10, 1, v11
          v_cmp_eq_u32 vcc, 1, v10
          v_mov_b32 v15, 0.5
          v_cndmask_b32 v12, v12, v15, vcc
          v_mov_b32 v15, 0
          v_cndmask_b32 v14, v14, v15, vcc
          v_lshlrev_b32 v15, 3, v3
          v_cvt_f32_u32 v15, v15
          v_fmac_f32 v14, v15, v12''')
    for ks in range(2):
        for jj in range(8): a(f'v_mov_b32 {v(20+jj)}, {hx(f2u(32.0*ks + jj))}\nv_fma_f32 {v(20+jj)}, {v(20+jj)}, v12, v14')
        for jj in range(8): a(f'v_fract_f32 {v(20+jj)}, {v(20+jj)}')
        for jj in range(8): a(f'v_cos_f32 {v(20+jj)}, {v(20+jj)}')
        for q in range(4): a(f'v_cvt_pk_bf16_f32 {v(FB+4*ks+q)}, {v(20+2*q)}, {v(21+2*q)}')
    a(f'''v_cmp_ne_u32 vcc, 0, v8
          v_and_b32 v10, 3, v6
          v_lshlrev_b32 v10, 2, v10
          v_xor_b32 v10, v2, v10
          v_lshlrev_b32 v10, 4, v10
          v_lshl_add_u32 v10, v6, 8, v10
          v_bfe_u32 v11, v0, 2, 2
          v_lshl_add_u32 v12, v3, 3, v11
          v_lshlrev_b32 v12, 8, v12
          v_and_b32 v13, 3, v0
          v_lshl_add_u32 v12, v13, 4, v12
          v_lshlrev_b32 v11, 6, v11''')
    for p in range(4): a(f'v_xor_b32 {v(4+p)}, {64*p}, v11\nv_add_u32 {v(4+p)}, {v(4+p)}, v12')
    for n in range(4):
        b = 32 + 10 * n
        a(f's_waitcnt vmcnt({9 - 3*n})\nv_cndmask_b32 {v(b+8)}, 0, {v(b+8)}, vcc')
        for q in range(4):
            a(f'''v_lshlrev_b32 v20, 16, {v(b+q)}
                  v_and_b32 v21, 0xffff0000, {v(b+q)}
                  v_lshlrev_b32 v22, 16, {v(b+8-q)}
                  v_and_b32 v23, 0xffff0000, {v(b+7-q)}
                  v_add_f32 v20, v20, v22
                  v_add_f32 v21, v21, v23
                  v_cvt_pk_bf16_f32 {v(24+q)}, v20, v21''')
        a(f'ds_write_b128 v10, v[24:27] offset:{4096*n}')
    a('s_waitcnt lgkmcnt(0)\ns_barrier')
    st.real()
    fa = lambda p, tp, ks: 96 + ((p * 2 + tp) * 2 + ks) * 4
    for p in range(4):
        for tp in range(2):
            for ks in range(2):
                for hf in range(2):
                    a(f'ds_read_b64_tr_b16 {v(fa(p,tp,ks)+2*hf,2)}, {v(4+p)} offset:{(32*ks+4*hf)*256 + 8*tp}')
    for p in range(4):
        a(f's_waitcnt lgkmcnt({min(15, 24 - 8*p)})')
        for ks in range(2):
            for tp in range(2):
                acc = 32 + (p * 2 + tp) * 4
                a(f'{MF} {v(acc,4)}, {v(fa(p,tp,ks),4)}, {v(FB+4*ks,4)}, {v(acc,4) if ks else 0}')
    for p in range(4):
        for q in range(4): a(f'v_cvt_pk_bf16_f32 {v(64+4*p+q)}, {v(32+8*p+2*q)}, {v(33+8*p+2*q)}')
        a(f'buffer_store_dwordx4 {v(64+4*p,4)}, v16, s[16:19], 0 offen offset:{64*p}')

def gate(a, cfg, st, first):
    a(f'''s_sub_u32 s27, s26, {first}
          s_lshl_b32 s27, s27, 3
          s_add_u32 s27, s27, s25
          s_lshl_b32 s28, s27, 7
          s_lshl_b32 s29, s24, 5
          s_add_u32 s28, s28, s29
          v_add_u32 v6, s28, v2
          s_movk_i32 s33, 896
          v_lshlrev_b32 v7, 4, v3
          v_mad_u32_u24 v8, v6, s33, v7
          v_add_u32 v9, {16*896}, v8
          s_load_dwordx2 s[40:41], s[0:1], 64
          s_load_dwordx2 s[42:43], s[0:1], 56''')
    for ks in range(14):
        for t in range(2): a(f'buffer_load_dwordx4 {v(32+(ks*2+t)*4,4)}, {v(8+t)}, s[4:7], 0 offen offset:{64*ks}')
    a('s_waitcnt lgkmcnt(0)')
    srd(a, 20, 40, 896); srd(a, 44, 42, WOB); srd(a, 48, 90, 8192, WS_G)
    for ks in range(14): a(f'buffer_load_dwordx4 {v(144+4*ks,4)}, v7, s[20:23], 0 offen offset:{64*ks}')
    a(f'''s_mul_i32 s29, s27, 25088
          s_lshl_b32 s30, s24, 10
          s_add_u32 s29, s29, s30
          v_lshlrev_b32 v10, 4, v0''')
    for n in range(7): a(f'buffer_load_dwordx4 v[200:203], v10, s[44:47], s29 offen\ns_add_u32 s29, s29, 4096')
    a('s_waitcnt vmcnt(7)')
    for ks in range(14):
        for t in range(2): a(f'{MF} {v(16+4*t,4)}, {v(32+(ks*2+t)*4,4)}, {v(144+4*ks,4)}, {v(16+4*t,4) if ks else 0}')
    a(f'''v_lshlrev_b32 v6, 4, v3
          s_lshl_b32 s28, s28, 2
          v_add_u32 v6, s28, v6
          v_mov_b32 v7, {hx(OOB)}
          v_cmp_eq_u32 vcc, 0, v2
          v_cndmask_b32 v6, v7, v6, vcc''')
    R8 = range(16, 24)
    for r in R8: a(f'v_cvt_pk_bf16_f32 {v(r)}, {v(r)}, {v(r)}')
    for r in R8: a(f'v_lshlrev_b32 {v(r)}, 16, {v(r)}')
    for r in R8: a(f'v_mul_f32 {v(r)}, {hx(f2u(-math.log2(math.e)))}, {v(r)}')
    for r in R8: a(f'v_exp_f32 {v(r)}, {v(r)}')
    for r in R8: a(f'v_add_f32 {v(r)}, 1.0, {v(r)}')
    for r in R8: a(f'v_rcp_f32 {v(r)}, {v(r)}')
    for r in R8: a(f'v_cvt_pk_bf16_f32 {v(r)}, {v(r)}, {v(r)}')
    for r in R8: a(f'v_lshlrev_b32 {v(r)}, 16, {v(r)}')
    for r in R8: a(f'v_sub_f32 {v(r+8)}, 1.0, {v(r)}')
    for r in R8: a(f'v_cvt_pk_bf16_f32 {v(r)}, {v(r)}, {v(r+8)}')
    for t in range(2): a(f'buffer_store_dwordx4 {v(16+4*t,4)}, v6, s[48:51], 0 offen offset:{64*t}')

def kernel1(a, cfg):
    st = Stamps(a, cfg, 0)
    nrb = (S + 32 * cfg.TQ - 1) // (32 * cfg.TQ)
    a('s_cmp_ge_u32 s2, %d\ns_cbranch_scc1 K1_end' % (8 * (nrb + 10)))
    st.real()
    a('''s_load_dwordx2 s[92:93], s[0:1], 0
         s_load_dwordx2 s[94:95], s[0:1], 48
         s_load_dwordx2 s[90:91], s[0:1], 88
         s_and_b32 s25, s2, 7
         s_lshr_b32 s26, s2, 3''')
    lane_setup(a)
    a('s_waitcnt lgkmcnt(0)')
    srd(a, 4, 92, XB); srd(a, 8, 94, WB); srd(a, 12, 90, XB); srd(a, 16, 90, 0x100000, WS_A)
    a(f's_cmp_ge_u32 s26, {nrb + 8}\ns_cbranch_scc1 K1_gate\ns_cmp_ge_u32 s26, {nrb}\ns_cbranch_scc1 K1_spec')
    n0 = st.n
    end, lds, _ = attention(a, cfg, st)
    st.flush(90); a('s_endpgm')
    a.label('K1_spec'); st.n = n0; spectral(a, cfg, st, nrb); st.flush(90); a('s_endpgm')
    a.label('K1_gate'); st.n = n0; gate(a, cfg, st, nrb + 8); st.flush(90)
    a.label('K1_end'); a('s_endpgm')
    return 8 * (nrb + 10), lds, max(end, 204)

from gen2 import kernel2

def build(cfg):
    a = Asm()
    hdr = open('cdna_kernels/%s.s.ref' % NAME).read().split('; Override launch')[0]
    bodies = []
    for nm, fn in (('fnet_k1_kernel', kernel1), ('fnet_k2_kernel', kernel2)):
        b = Asm(); g, lds, nv = fn(b, cfg); bodies.append((nm, b, g, lds, nv))
    out = hdr
    for nm, b, g, lds, nv in bodies: out += f'; @launch kernel={nm} grid=({g},1,1) block=(256,1,1) lds={lds}\n'
    out += '.amdgcn_target "amdgcn-amd-amdhsa--gfx950"\n.text\n'
    for nm, b, g, lds, nv in bodies:
        out += f'.globl {nm}\n.p2align 8\n.type {nm},@function\n{nm}:\n' + b.text()
    out += '.section .rodata,"a"\n'
    for nm, b, g, lds, nv in bodies:
        nv4 = (nv + 3) // 4 * 4
        out += (f'.p2align 6\n.amdhsa_kernel {nm}\n  .amdhsa_next_free_vgpr {nv4}\n  .amdhsa_next_free_sgpr 102\n'
                f'  .amdhsa_accum_offset {nv4}\n  .amdhsa_group_segment_fixed_size 0\n  .amdhsa_kernarg_size 96\n'
                '  .amdhsa_user_sgpr_count 2\n  .amdhsa_user_sgpr_kernarg_segment_ptr 1\n'
                '  .amdhsa_system_sgpr_workgroup_id_x 1\n.end_amdhsa_kernel\n')
    return out

if __name__ == '__main__':
    cfg = Cfg(); path = 'cdna_kernels/%s.s' % NAME
    for arg in sys.argv[1:]:
        if '=' in arg:
            k, val = arg.split('='); setattr(cfg, k, int(val))
        else: path = arg
    open(path, 'w').write(build(cfg))
```
